```python
import torch

def _softmax(x, axis=-1):
    return torch.softmax(x, dim=axis)
def _gelu(x):
    return torch.nn.functional.gelu(x, approximate="tanh")
def _silu(x):
    return torch.nn.functional.silu(x)
def _sigmoid(x):
    return torch.sigmoid(x)
def _layernorm(x, axis=-1, eps=1e-5):
    m = x.mean(dim=axis, keepdim=True)
    v = x.var(dim=axis, keepdim=True, unbiased=False)
    return (x - m) / torch.sqrt(v + eps)
def _scatter_add(tgt, idx, src, axis=0):
    return tgt.clone().index_add_(axis, idx, src)
def _segment_sum(src, seg, n):
    out = torch.zeros((n,) + src.shape[1:], dtype=src.dtype)
    return out.index_add_(0, seg, src)
def _pad(x, pw):
    flat = tuple(v for pair in reversed(pw) for v in pair)
    return torch.nn.functional.pad(x, flat)

kernel_name = 'standalone__rmsnorm__sampling'

def setup_inputs():

    _w = (lambda a: (lambda t: t.to(torch.bfloat16) if t.is_floating_point() else t)(torch.as_tensor(a)))
    B, S, D = 1024, 16, 512
    return {
        "x": _w((lambda *s: torch.randn(*s, dtype=torch.bfloat16) * 0.05)(B, S, D)),
        "g": _w((lambda *s: torch.randn(*s, dtype=torch.bfloat16) * 0.05)(D) + 1.0),
    }

def reference(x, g):
    rms = torch.sqrt((x * x).mean(axis=-1, keepdims=True) + 1e-6)
    return x / rms * g
```

```python
import sys

NROWS = 16384
ROWB = 1024
NAME = "standalone__rmsnorm__sampling"

HDR = """; Kernarg layout for this problem (40 bytes, ptrs only, base s[0:1]):
; @launch grid=({grid},1,1) block=({block},1,1) lds=0
.amdgcn_target "amdgcn-amd-amdhsa--gfx950"
.text
.globl {name}_kernel
.p2align 8
.type {name}_kernel,@function
{name}_kernel:
"""

FTR = """.section .rodata,"a"
.p2align 6
.amdhsa_kernel {name}_kernel
  .amdhsa_next_free_vgpr {vgpr}
  .amdhsa_next_free_sgpr {sgpr}
  .amdhsa_accum_offset {accum}
  .amdhsa_group_segment_fixed_size 0
  .amdhsa_kernarg_size 40
  .amdhsa_user_sgpr_count 2
  .amdhsa_user_sgpr_kernarg_segment_ptr 1
  .amdhsa_system_sgpr_workgroup_id_x 1
  .amdhsa_float_denorm_mode_32 3
.end_amdhsa_kernel
"""


def log2(n):
    l = n.bit_length() - 1
    assert 1 << l == n
    return l


def gen_v1(block=256, R=4, ldf="", stf="", gldf=""):
    waves = block // 64
    rows_per_wg = waves * R
    grid = NROWS // rows_per_wg
    o = []
    e = o.append
    e("    s_load_dwordx2 s[4:5], s[0:1], 0")
    e("    s_load_dwordx2 s[8:9], s[0:1], 8")
    e("    s_load_dwordx2 s[12:13], s[0:1], 16")
    e("    v_and_b32 v2, 63, v0")
    e("    v_lshrrev_b32 v3, 6, v0")
    e("    v_lshlrev_b32 v2, 4, v2                 ; lane*16")
    e(f"    v_lshl_add_u32 v1, v3, {log2(R*ROWB)}, v2")
    e(f"    s_lshl_b32 s3, s2, {log2(rows_per_wg*ROWB)}")
    e("    s_mov_b32 s6, 0x1000000")
    e("    s_mov_b32 s7, 0x20000")
    e("    s_mov_b32 s10, 0x400")
    e("    s_mov_b32 s11, 0x20000")
    e("    s_mov_b32 s14, 0x1000000")
    e("    s_mov_b32 s15, 0x20000")
    e(f"    s_cmp_ge_u32 s2, {grid}")
    e("    s_cbranch_scc1 L_done")
    e("    s_waitcnt lgkmcnt(0)")
    X = 16
    G = 8
    e(f"    buffer_load_dwordx4 v[4:7], v2, s[8:11], 0 offen {gldf}")
    soffs = []
    for r in range(R):
        if r % 4 == 0 and r > 0:
            e(f"    s_add_u32 s{16 + r // 4}, s3, {r * ROWB}")
        so = "s3" if r < 4 else f"s{16 + r // 4}"
        soffs.append(so)
        off = (r % 4) * ROWB
        e(f"    buffer_load_dwordx4 v[{X+4*r}:{X+4*r+3}], v1, s[4:7], {so} offen offset:{off} {ldf}")
    e("    s_mov_b32 s24, 0xffff0000")
    e("    s_mov_b32 s25, 0x3b000000            ; 1/512")
    e("    s_mov_b32 s26, 0x358637bd            ; 1e-6")
    e(f"    s_waitcnt vmcnt({R})")
    for i in range(4):
        e(f"    v_lshlrev_b32 v{G+2*i}, 16, v{4+i}")
        e(f"    v_and_b32 v{G+2*i+1}, s24, v{4+i}")
    T = X + 4 * R
    A = T + 8
    for r in range(R):
        e(f"    s_waitcnt vmcnt({R - 1})")
        for i in range(4):
            e(f"    v_lshlrev_b32 v{T+2*i}, 16, v{X+4*r+i}")
            e(f"    v_and_b32 v{T+2*i+1}, s24, v{X+4*r+i}")
        e(f"    v_pk_mul_f32 v[{A}:{A+1}], v[{T}:{T+1}], v[{T}:{T+1}]")
        for i in range(1, 4):
            e(f"    v_pk_fma_f32 v[{A}:{A+1}], v[{T+2*i}:{T+2*i+1}], v[{T+2*i}:{T+2*i+1}], v[{A}:{A+1}]")
        e(f"    v_add_f32 v{A}, v{A}, v{A+1}")
        pk = [f"    v_pk_mul_f32 v[{T+2*i}:{T+2*i+1}], v[{T+2*i}:{T+2*i+1}], v[{G+2*i}:{G+2*i+1}]" for i in range(4)]
        e(pk[0]); e(pk[1])
        e(f"    v_add_f32_dpp v{A}, v{A}, v{A} quad_perm:[1,0,3,2] row_mask:0xf bank_mask:0xf")
        e(pk[2]); e(pk[3])
        e(f"    v_add_f32_dpp v{A}, v{A}, v{A} quad_perm:[2,3,0,1] row_mask:0xf bank_mask:0xf")
        e("    s_nop 1")
        e(f"    v_add_f32_dpp v{A}, v{A}, v{A} row_half_mirror row_mask:0xf bank_mask:0xf")
        e("    s_nop 1")
        e(f"    v_add_f32_dpp v{A}, v{A}, v{A} row_mirror row_mask:0xf bank_mask:0xf")
        e(f"    v_mov_b32 v{A+1}, v{A}")
        e("    s_nop 1")
        e(f"    v_permlane16_swap_b32 v{A}, v{A+1}")
        e(f"    v_add_f32 v{A}, v{A}, v{A+1}")
        e(f"    v_mov_b32 v{A+1}, v{A}")
        e("    s_nop 1")
        e(f"    v_permlane32_swap_b32 v{A}, v{A+1}")
        e(f"    v_add_f32 v{A}, v{A}, v{A+1}")
        e(f"    v_mul_f32 v{A}, s25, v{A}")
        e(f"    v_cvt_pk_bf16_f32 v{A}, v{A}, v{A}")
        e(f"    v_and_b32 v{A}, s24, v{A}")
        e(f"    v_add_f32 v{A}, s26, v{A}")
        e(f"    v_cvt_pk_bf16_f32 v{A}, v{A}, v{A}")
        e(f"    v_and_b32 v{A}, s24, v{A}")
        e(f"    v_sqrt_f32 v{A}, v{A}")
        e("    s_nop 0")
        e(f"    v_cvt_pk_bf16_f32 v{A}, v{A}, v{A}")
        e(f"    v_and_b32 v{A}, s24, v{A}")
        e(f"    v_rcp_f32 v{A}, v{A}")
        e("    s_nop 0")
        for i in range(4):
            e(f"    v_pk_mul_f32 v[{T+2*i}:{T+2*i+1}], v[{T+2*i}:{T+2*i+1}], v[{A}:{A+1}] op_sel_hi:[1,0]")
        for i in range(4):
            e(f"    v_cvt_pk_bf16_f32 v{X+4*r+i}, v{T+2*i}, v{T+2*i+1}")
        off = (r % 4) * ROWB
        e(f"    buffer_store_dwordx4 v[{X+4*r}:{X+4*r+3}], v1, s[12:15], {soffs[r]} offen offset:{off} {stf}")
    e("L_done:")
    e("    s_endpgm")
    vg = A + 2
    return (HDR.format(grid=grid, block=block, name=NAME) + "\n".join(o) + "\n"
            + FTR.format(name=NAME, vgpr=vg, sgpr=32, accum=(vg + 3) // 4 * 4))


if __name__ == "__main__":
    import ast
    fn = sys.argv[1]
    out = sys.argv[2]
    kw = {}
    for a in sys.argv[3:]:
        k, v = a.split("=", 1)
        try:
            v = ast.literal_eval(v)
        except Exception:
            pass
        kw[k] = v
    open(out, "w").write(globals()[fn](**kw))
```

```python
import sys
from gen import HDR, FTR, NAME, NROWS, ROWB, log2

def row_compute(e, XR, T, A, G):
    for i in range(4):
        e(f"    v_lshlrev_b32 v{T+2*i}, 16, v{XR+i}")
        e(f"    v_and_b32 v{T+2*i+1}, s24, v{XR+i}")
    e(f"    v_pk_mul_f32 v[{A}:{A+1}], v[{T}:{T+1}], v[{T}:{T+1}]")
    for i in range(1, 4):
        e(f"    v_pk_fma_f32 v[{A}:{A+1}], v[{T+2*i}:{T+2*i+1}], v[{T+2*i}:{T+2*i+1}], v[{A}:{A+1}]")
    e(f"    v_add_f32 v{A}, v{A}, v{A+1}")
    pk = [f"    v_pk_mul_f32 v[{T+2*i}:{T+2*i+1}], v[{T+2*i}:{T+2*i+1}], v[{G+2*i}:{G+2*i+1}]" for i in range(4)]
    e(pk[0]); e(pk[1])
    e(f"    v_add_f32_dpp v{A}, v{A}, v{A} quad_perm:[1,0,3,2] row_mask:0xf bank_mask:0xf")
    e(pk[2]); e(pk[3])
    e(f"    v_add_f32_dpp v{A}, v{A}, v{A} quad_perm:[2,3,0,1] row_mask:0xf bank_mask:0xf")
    e("    s_nop 1")
    e(f"    v_add_f32_dpp v{A}, v{A}, v{A} row_half_mirror row_mask:0xf bank_mask:0xf")
    e("    s_nop 1")
    e(f"    v_add_f32_dpp v{A}, v{A}, v{A} row_mirror row_mask:0xf bank_mask:0xf")
    e(f"    v_mov_b32 v{A+1}, v{A}")
    e("    s_nop 1")
    e(f"    v_permlane16_swap_b32 v{A}, v{A+1}")
    e(f"    v_add_f32 v{A}, v{A}, v{A+1}")
    e(f"    v_mov_b32 v{A+1}, v{A}")
    e("    s_nop 1")
    e(f"    v_permlane32_swap_b32 v{A}, v{A+1}")
    e(f"    v_add_f32 v{A}, v{A}, v{A+1}")
    e(f"    v_mul_f32 v{A}, s25, v{A}")
    e(f"    v_cvt_pk_bf16_f32 v{A}, v{A}, v{A}")
    e(f"    v_and_b32 v{A}, s24, v{A}")
    e(f"    v_add_f32 v{A}, s26, v{A}")
    e(f"    v_cvt_pk_bf16_f32 v{A}, v{A}, v{A}")
    e(f"    v_and_b32 v{A}, s24, v{A}")
    e(f"    v_sqrt_f32 v{A}, v{A}")
    e("    s_nop 0")
    e(f"    v_cvt_pk_bf16_f32 v{A}, v{A}, v{A}")
    e(f"    v_and_b32 v{A}, s24, v{A}")
    e(f"    v_rcp_f32 v{A}, v{A}")
    e("    s_nop 0")
    for i in range(4):
        e(f"    v_pk_mul_f32 v[{T+2*i}:{T+2*i+1}], v[{T+2*i}:{T+2*i+1}], v[{A}:{A+1}] op_sel_hi:[1,0]")
    for i in range(4):
        e(f"    v_cvt_pk_bf16_f32 v{XR+i}, v{T+2*i}, v{T+2*i+1}")

def gen_v2(block=256, R=8, D=3, ldf="nt", stf="sc1", c=0, numa=1):
    waves = block // 64
    rows_per_wg = waves * R
    CH = rows_per_wg // 8
    grid = NROWS // rows_per_wg
    wpc = 8 // R
    o = []
    e = o.append
    e("    s_load_dwordx2 s[4:5], s[0:1], 0")
    e("    s_load_dwordx2 s[8:9], s[0:1], 8")
    e("    s_load_dwordx2 s[12:13], s[0:1], 16")
    e("    v_and_b32 v2, 63, v0")
    e("    v_lshrrev_b32 v3, 6, v0            ; wave")
    e("    v_lshlrev_b32 v2, 4, v2                 ; lane*16")
    if numa:
        e(f"    v_and_b32 v4, {wpc-1}, v3")
        e(f"    v_lshrrev_b32 v3, {log2(wpc)}, v3")
        e(f"    v_lshl_add_u32 v1, v4, {log2(R*ROWB)}, v2")
        e(f"    v_lshl_add_u32 v1, v3, 14, v1")
        e("    s_lshr_b32 s20, s2, 3")
        e("    s_lshl_b32 s20, s20, 2")
        e("    s_and_b32 s21, s2, 3")
        e("    s_or_b32 s20, s20, s21")
        e(f"    s_lshl_b32 s3, s20, {14 + log2(CH)}")
        e("    s_lshr_b32 s21, s3, 21")
        e("    s_lshr_b32 s22, s2, 2")
        e("    s_xor_b32 s21, s21, s22")
        e("    s_and_b32 s21, s21, 1")
        e(f"    s_xor_b32 s21, s21, {c}")
        e("    s_lshl_b32 s21, s21, 13")
        e("    s_or_b32 s3, s3, s21")
    else:
        e(f"    v_lshl_add_u32 v1, v3, {log2(R*ROWB)}, v2")
        e(f"    s_lshl_b32 s3, s2, {log2(rows_per_wg*ROWB)}")
    e("    s_add_u32 s16, s3, 4096")
    e("    s_mov_b32 s6, 0x1000000")
    e("    s_mov_b32 s7, 0x20000")
    e("    s_mov_b32 s10, 0x400")
    e("    s_mov_b32 s11, 0x20000")
    e("    s_mov_b32 s14, 0x1000000")
    e("    s_mov_b32 s15, 0x20000")
    e(f"    s_cmp_ge_u32 s2, {grid}")
    e("    s_cbranch_scc1 L_done")
    e("    s_waitcnt lgkmcnt(0)")
    X = 16; G = 8
    T = X + 4 * R; A = T + 8
    ops = []
    so = lambda r: ("s3" if r < 4 else "s16") + f" offen offset:{(r%4)*ROWB}"
    def ld(r):
        b = X + 4 * r
        e(f"    buffer_load_dwordx4 v[{b}:{b+3}], v1, s[4:7], {so(r)} {ldf}")
        ops.append(('l', r))
    def st(r):
        b = X + 4 * r
        e(f"    buffer_store_dwordx4 v[{b}:{b+3}], v1, s[12:15], {so(r)} {stf}")
        ops.append(('s', r))
    def wait_for(op, tag=""):
        n = len(ops) - 1 - ops.index(op)
        e(f"    s_waitcnt vmcnt({min(n,63)})" + tag)
    e(f"    buffer_load_dwordx4 v[4:7], v2, s[8:11], 0 offen")
    ops.append(('g', 0))
    for r in range(min(D, R)):
        ld(r)
    e("    s_mov_b32 s24, 0xffff0000")
    e("    s_mov_b32 s25, 0x3b000000            ; 1/512")
    e("    s_mov_b32 s26, 0x358637bd            ; 1e-6")
    wait_for(('g', 0))
    for i in range(4):
        e(f"    v_lshlrev_b32 v{G+2*i}, 16, v{4+i}")
        e(f"    v_and_b32 v{G+2*i+1}, s24, v{4+i}")
    for r in range(R):
        tag = (" ;@T1" if r == 0 else "") + (" ;@T2" if r == R - 1 else "")
        wait_for(('l', r), tag)
        nxt = r + D
        if nxt < R:
            ld(nxt)
        row_compute(e, X + 4 * r, T, A, G)
        st(r)
    e("L_done:")
    e("    s_endpgm")
    vg = A + 2
    return (HDR.format(grid=grid, block=block, name=NAME) + "\n".join(o) + "\n"
            + FTR.format(name=NAME, vgpr=vg, sgpr=32, accum=(vg + 3) // 4 * 4))

if __name__ == "__main__":
    import ast
    fn, out = sys.argv[1], sys.argv[2]
    kw = {}
    for a in sys.argv[3:]:
        k, v = a.split("=", 1)
        try:
            v = ast.literal_eval(v)
        except Exception:
            pass
        kw[k] = v
    open(out, "w").write(globals()[fn](**kw))
```

```python
import sys, re
src, out, kind = sys.argv[1], sys.argv[2], sys.argv[3]
s = open(src).read()
lab = "standalone__rmsnorm__sampling_kernel:\n"
s = s.replace(lab, lab + "    s_memrealtime s[40:41]\n    s_mov_b32 s48, s2\n    v_readfirstlane_b32 s49, v0\n    s_load_dwordx2 s[56:57], s[0:1], 24\n")
def spin(name, reg):
    return f"""{name}:
    s_memrealtime s[42:43]
    s_waitcnt lgkmcnt(0)
    s_sub_u32 s44, s42, {reg}
    s_cmp_lt_i32 s44, 0
    s_cbranch_scc1 {name}
"""
if kind == "xcc":
    body = """    s_waitcnt vmcnt(0) lgkmcnt(0)
    s_getreg_b32 s45, hwreg(HW_REG_XCC_ID)
    s_sub_u32 s45, s45, s48
    s_and_b32 s45, s45, 7
    s_mul_i32 s45, s45, 1000
    s_add_u32 s45, s45, 1000
    s_add_u32 s40, s40, s45
""" + spin("L_spin", "s40")
elif kind == "par":
    def probe(srd, off, acc):
        t = ""
        t += f"    s_mov_b32 {acc}, 0\n"
        for k in range(1, 8):
            o = off + k * 32768 + 256 * k
            t += f"""    s_mov_b32 s58, {o}
    s_memtime s[42:43]
    s_waitcnt lgkmcnt(0)
    buffer_load_dword v5, v4, {srd}, s58 offen
    s_waitcnt vmcnt(0)
    s_memtime s[46:47]
    s_waitcnt lgkmcnt(0)
    s_sub_u32 s46, s46, s42
    s_min_u32 s46, s46, 1500
    s_add_u32 {acc}, {acc}, s46
"""
        return t
    body = """    s_waitcnt vmcnt(0) lgkmcnt(0)
    s_or_b32 s45, s48, s49
    s_cmp_lg_u32 s45, 0
    s_cbranch_scc1 L_done
    s_add_u32 s45, s40, 900
""" + spin("L_spin0", "s45") + "    v_mov_b32 v4, 0\n" + probe("s[4:7]", 0, "s50") + probe("s[4:7]", 8192, "s51") + probe("s[12:15]", 0, "s52") + probe("s[12:15]", 8192, "s53") + """
    s_getreg_b32 s45, hwreg(HW_REG_XCC_ID)
    s_lshr_b32 s54, s45, 2
    s_and_b32 s54, s54, 1
    s_cmp_gt_u32 s50, s51
    s_cselect_b32 s46, 1, 0
    s_xor_b32 s46, s46, s54
    s_cmp_gt_u32 s52, s53
    s_cselect_b32 s47, 1, 0
    s_xor_b32 s47, s47, s54
    s_lshl_b32 s47, s47, 1
    s_or_b32 s46, s46, s47
    v_mov_b32 v8, s50
    v_mov_b32 v9, s51
    v_mov_b32 v10, s52
    v_mov_b32 v11, s53
    v_mov_b32 v12, s45
    v_mov_b32 v13, s46
    v_mov_b32 v14, s4
    v_mov_b32 v15, s12
    s_mov_b64 exec, 1
    global_store_dwordx4 v4, v[8:11], s[56:57]
    global_store_dwordx4 v4, v[12:15], s[56:57] offset:16
    s_mul_i32 s45, s46, 1000
    s_add_u32 s45, s45, 3000
    s_add_u32 s40, s40, s45
""" + spin("L_spin", "s40")
s = s.replace("L_done:\n", body + "L_done:\n")
s = re.sub(r"next_free_sgpr \d+", "next_free_sgpr 60", s)
open(out, "w").write(s)
```

```python
import sys, re
src, out = sys.argv[1], sys.argv[2]
s = open(src).read()
lab = "standalone__rmsnorm__sampling_kernel:\n"
s = s.replace(lab, lab + "    s_memrealtime s[40:41]\n    s_mov_b32 s48, s2\n    v_readfirstlane_b32 s49, v0\n    s_load_dwordx2 s[56:57], s[0:1], 24\n")
def spin(name, reg):
    return f"""{name}:
    s_memrealtime s[42:43]
    s_waitcnt lgkmcnt(0)
    s_sub_u32 s44, s42, {reg}
    s_cmp_lt_i32 s44, 0
    s_cbranch_scc1 {name}
"""
def probe(srd, off, acc):
    t = f"    s_mov_b32 {acc}, 0\n"
    for k in range(0, 8):
        o = off + k * 32768 + 256 * k
        t += f"""    s_add_u32 s58, s59, {o}
    s_memtime s[42:43]
    s_waitcnt lgkmcnt(0)
    buffer_load_dword v5, v4, {srd}, s58 offen
    s_waitcnt vmcnt(0)
    s_memtime s[46:47]
    s_waitcnt lgkmcnt(0)
    s_sub_u32 s46, s46, s42
    s_min_u32 s46, s46, 1200
"""
        if k > 0: t += f"    s_add_u32 {acc}, {acc}, s46\n"
    return t
body = """    s_waitcnt vmcnt(0) lgkmcnt(0)
    s_or_b32 s45, s48, s49
    s_cmp_lg_u32 s45, 0
    s_cbranch_scc1 L_done
    s_add_u32 s45, s40, 900
""" + spin("L_spin0", "s45") + """    v_mov_b32 v4, 0
    s_getreg_b32 s45, hwreg(HW_REG_XCC_ID)
    s_lshr_b32 s54, s45, 2
    s_and_b32 s54, s54, 1
    s_mov_b32 s60, 0
    s_mov_b32 s61, 0
    s_mov_b32 s59, 0
L_page:
""" + probe("s[4:7]", 0, "s50") + probe("s[4:7]", 8192, "s51") + probe("s[12:15]", 0, "s52") + probe("s[12:15]", 8192, "s53") + """
    s_mul_i32 s60, s60, 10
    s_mul_i32 s61, s61, 10
    s_cmp_gt_u32 s50, s51
    s_cselect_b32 s46, 1, 0
    s_xor_b32 s46, s46, s54
    s_add_u32 s60, s60, s46
    s_add_u32 s60, s60, 1
    s_cmp_gt_u32 s52, s53
    s_cselect_b32 s47, 1, 0
    s_xor_b32 s47, s47, s54
    s_add_u32 s61, s61, s47
    s_add_u32 s61, s61, 1
    s_add_u32 s59, s59, 0x200000
    s_cmp_lt_u32 s59, 0x1000000
    s_cbranch_scc1 L_page
    v_mov_b32 v8, s60
    v_mov_b32 v9, s61
    v_mov_b32 v10, s45
    s_lshr_b32 s46, s4, 12
    s_and_b32 s46, s46, 0xfff
    v_mov_b32 v11, s46
    s_lshr_b32 s46, s12, 12
    s_and_b32 s46, s46, 0xfff
    v_mov_b32 v12, s46
    v_mov_b32 v13, s8
    v_mov_b32 v14, s56
    v_mov_b32 v15, s0
    s_mov_b64 exec, 1
    global_store_dwordx4 v4, v[8:11], s[56:57]
    global_store_dwordx4 v4, v[12:15], s[56:57] offset:16
"""
s = s.replace("L_done:\n", body + "L_done:\n")
s = re.sub(r"next_free_sgpr \d+", "next_free_sgpr 64", s)
open(out, "w").write(s)
```

```python
import sys
from gen import NAME, NROWS, ROWB, log2

HDR = """; RMSNorm over rows of 512 bf16 (16384 rows).  out = x * rsqrt(mean(x^2) + 1e-6) * g
; @launch grid=({grid},1,1) block=({block},1,1) lds={lds}
.amdgcn_target "amdgcn-amd-amdhsa--gfx950"
.text
.p2align 12
.globl {name}_kernel
.p2align 8
.type {name}_kernel,@function
{name}_kernel:
"""
FTR = """.section .rodata,"a"
.p2align 6
.amdhsa_kernel {name}_kernel
  .amdhsa_next_free_vgpr {vgpr}
  .amdhsa_next_free_sgpr {sgpr}
  .amdhsa_accum_offset {accum}
  .amdhsa_group_segment_fixed_size 0
  .amdhsa_kernarg_size 40
  .amdhsa_user_sgpr_count 2
  .amdhsa_user_sgpr_kernarg_segment_ptr 1
  .amdhsa_system_sgpr_workgroup_id_x 1
  .amdhsa_float_denorm_mode_32 3
.end_amdhsa_kernel
"""

DPP = ["row_shr:1 row_mask:0xf bank_mask:0xf bound_ctrl:0",
       "row_shr:2 row_mask:0xf bank_mask:0xf bound_ctrl:0",
       "row_shr:4 row_mask:0xf bank_mask:0xf bound_ctrl:0",
       "row_shr:8 row_mask:0xf bank_mask:0xf bound_ctrl:0",
       "row_bcast:15 row_mask:0xa bank_mask:0xf",
       "row_bcast:31 row_mask:0xc bank_mask:0xf"]

def row_compute(e, XR, T, A, G, EPS, SM, SC, SR, mid=None):
    e(f"    v_dot2_f32_bf16 v{A}, v{XR}, v{XR}, 0")
    for i in range(1, 4):
        e(f"    v_dot2_f32_bf16 v{A}, v{XR+i}, v{XR+i}, v{A}")
    fill = []
    for i in range(4):
        fill.append(f"    v_lshlrev_b32 v{T+2*i}, 16, v{XR+i}")
        fill.append(f"    v_and_b32 v{T+2*i+1}, s{SM}, v{XR+i}")
    for i in range(4):
        fill.append(f"    v_pk_mul_f32 v[{T+2*i}:{T+2*i+1}], v[{T+2*i}:{T+2*i+1}], v[{G+2*i}:{G+2*i+1}]")
    e(fill.pop(0)); e(fill.pop(0)); e(fill.pop(0))
    for s in range(6):
        e(f"    v_add_f32_dpp v{A}, v{A}, v{A} {DPP[s]}")
        if s < 5:
            n = 0
            while n < 2 and fill:
                e(fill.pop(0)); n += 1
            if n < 2:
                e(f"    s_nop {1 - n}")
    assert not fill
    e(f"    v_fma_f32 v{A}, v{A}, s{SC}, v{EPS}")
    e(f"    v_rsq_f32 v{A}, v{A}")
    e("    s_nop 0" if mid is None else mid)
    e(f"    v_readlane_b32 s{SR}, v{A}, 63")
    e("    s_nop 1")
    for i in range(4):
        e(f"    v_pk_mul_f32 v[{T+2*i}:{T+2*i+1}], v[{T+2*i}:{T+2*i+1}], s[{SR}:{SR+1}] op_sel_hi:[1,0]")
    for i in range(4):
        e(f"    v_cvt_pk_bf16_f32 v{XR+i}, v{T+2*i}, v{T+2*i+1}")


def gen_v3(D=3, k=3, K=3, ldf="nt", stf="sc1", force=None, diag=0, probe=1, WAITN=None):
    R = 8; waves = 8; block = 512; grid = 256
    if WAITN is None: WAITN = K
    o = []
    e = o.append
    SENT = 0x7fc3a5a5
    P0 = 24
    e("    s_load_dwordx8 s[4:11], s[0:1], 0")
    e("    v_readfirstlane_b32 s12, v0                  ; wave*64")
    e("    s_lshr_b32 s13, s2, 3                        ; j")
    e("    s_and_b32 s14, s2, 3                         ; xl")
    e("    s_lshl2_add_u32 s14, s13, s14")
    e("    s_lshl_b32 s15, s14, 16")
    e("    s_and_b32 s16, s2, 4")
    e("    s_lshl_b32 s16, s16, 11")
    e("    s_or_b32 s17, s15, s16")
    e("    v_and_b32 v1, 63, v0")
    e("    v_lshlrev_b32 v1, 4, v1                      ; lane*16")
    e("    s_and_b32 s18, s12, 0xc0                     ; (w&3)<<6")
    e("    s_mul_i32 s18, s18, 0x120                    ; (w&3)<<14 | (w&3)<<11")
    e("    s_lshr_b32 s19, s12, 8                       ; w>>2")
    e("    s_mul_i32 s19, s19, 0x800400                 ; <<23 | <<10")
    e("    s_or_b32 s18, s18, s19")
    e("    s_or_b32 s18, s18, s15")
    e("    s_lshl_b32 s19, s12, 7                       ; (w&1)<<13")
    e("    s_xor_b32 s19, s19, s16")
    e("    s_and_b32 s19, s19, 0x2000")
    e("    s_or_b32 s19, s19, s18")
    e("    v_or_b32 v2, s19, v1")
    AD = 16
    X = 24
    G = 8
    T = X + 4 * R; A = T + 8; EPS = A + 1
    for r in range(1, k):
        e(f"    v_xor_b32 v{AD+r}, {(r << 10) | ((r & 1) << 13):#x}, v2")
    addr = lambda r: "v2" if r == 0 else f"v{AD+r}"
    e(f"    s_cmpk_ge_u32 s2, {grid}")
    e("    s_cbranch_scc1 L_done")
    if probe:
        e("    s_lshr_b32 s20, s16, 6")
        e("    s_or_b32 s20, s20, s17")
        e("    s_xor_b32 s21, s20, 0x2000")
        e(f"    s_mov_b32 s23, {SENT:#x}")
        for i in range(K):
            e(f"    s_mov_b32 s{P0+i}, s23")
        e("    s_cmp_lg_u32 s12, 0")
        e("    s_waitcnt lgkmcnt(0)")
        e("    s_cbranch_scc1 L_noprobe")
        def poff(i):
            m = i & 3; r = 7 - (i >> 2)
            return (m << 14) | ((r ^ (2 * m)) << 10) | ((i & 3) << 8)
        for i in range(K):
            e(f"    s_load_dword s{P0+i}, s[4:5], s20 offset:{poff(i):#x}")
        for i in range(K):
            e(f"    s_load_dword s{P0+K+i}, s[4:5], s21 offset:{poff(i):#x}")
        e("L_noprobe:")
    ops = []
    def ld(r):
        b = X + 4 * r
        e(f"    global_load_dwordx4 v[{b}:{b+3}], {addr(r)}, s[4:5] {ldf}")
        ops.append(('l', r))
    def st(r):
        b = X + 4 * r
        e(f"    global_store_dwordx4 {addr(r)}, v[{b}:{b+3}], s[8:9] {stf}")
        ops.append(('s', r))
    def wait_for(op, tag=""):
        n = len(ops) - 1 - ops.index(op)
        e(f"    s_waitcnt vmcnt({min(n,63)})" + tag)
    if not probe:
        e("    s_waitcnt lgkmcnt(0)")
    ld(0)
    e("    global_load_dwordx4 v[4:7], v1, s[6:7]")
    ops.append(('g', 0))
    for r in range(1, D):
        ld(r)
    e("    s_mov_b32 s0, 0xffff0000")
    e("    s_mov_b32 s1, 0x3b000000                     ; 1/512")
    e(f"    v_mov_b32 v{EPS}, 0x358637bd                 ; 1e-6")
    if probe:
        e("    v_mov_b32 v3, 0")
        e("    s_cbranch_scc1 L_wait")
        e(f"    s_waitcnt lgkmcnt({2*K - WAITN})")
        e("    s_mov_b32 s22, 0")
        for i in range(K):
            e(f"    s_cmp_lg_u32 s{P0+i}, s23")
            e("    s_addc_u32 s22, s22, 0")
        if diag: e("    s_nop 0 ;@T1")
        e(f"    s_cmp_gt_u32 s22, {WAITN // 2}")
        e("    s_cselect_b32 s20, s20, s21")
        e("    s_and_b32 s20, s20, 0x2000")
        if diag: e("    s_or_b32 s38, s20, s22")
        if force is not None:
            e("    s_lshr_b32 s20, s15, 8")
            e("    s_xor_b32 s20, s20, s16")
            if force: e("    s_xor_b32 s20, s20, 0x2000")
            e("    s_and_b32 s20, s20, 0x2000")
        e("    v_mov_b32 v0, s20")
        e("    ds_write_b32 v3, v0")
        e("    s_lshr_b32 s21, s14, 6")
        e("    s_lshr_b32 s3, s20, 13")
        e("    s_lshl1_add_u32 s21, s21, s3")
        e("    s_lshl_b32 s21, 1, s21")
        e("    s_mov_b32 s3, s21")
        e("    s_and_b32 s14, s14, 63")
        e("    s_lshl_b32 s14, s14, 2")
        e("    s_waitcnt lgkmcnt(0)")
        e("    s_barrier")
        e("    s_atomic_or s3, s[10:11], s14 glc")
        e("    s_branch L_go")
        e("L_wait:")
        e("    s_barrier")
        e("    ds_read_b32 v0, v3")
        e("    s_waitcnt lgkmcnt(0)")
        e("L_go:")
        e("    v_or3_b32 v3, v0, s18, v1")
    else:
        e("    s_lshr_b32 s20, s15, 8")
        e("    s_xor_b32 s20, s20, s16")
        if force: e("    s_xor_b32 s20, s20, 0x2000")
        e("    s_and_b32 s20, s20, 0x2000")
        e("    s_or_b32 s20, s20, s18")
        e("    v_or_b32 v3, s20, v1")
    for r in range(k, R):
        e(f"    v_xor_b32 v{AD+r}, {(r << 10):#x}, v3")
    wait_for(('g', 0))
    for i in range(4):
        e(f"    v_lshlrev_b32 v{G+2*i}, 16, v{4+i}")
        e(f"    v_and_b32 v{G+2*i+1}, s0, v{4+i}")
    for r in range(R):
        tag = (" ;@T1" if r == 0 and not (diag and probe) else "") + (" ;@T2" if r == R - 1 else "")
        wait_for(('l', r), tag)
        nxt = r + D
        if nxt < R:
            ld(nxt)
        row_compute(e, X + 4 * r, T, A, G, EPS, 0, 1, 36)
        st(r)
    if probe:
        e("    s_cmp_lg_u32 s12, 0")
        e("    s_cbranch_scc1 L_fin")
        e("    s_waitcnt lgkmcnt(0)")
        e("    s_and_b32 s3, s3, s21")
        if diag: e("    s_cselect_b32 s39, 1, 0\n    s_and_b32 s3, s3, s21")
        e("    s_cbranch_scc0 L_fin")
        e("    s_xor_b32 s20, s20, 0x2000")
        e("    s_or_b32 s20, s20, s15")
        e("    s_mov_b32 s22, 0")
        e("L_slow:")
        e("    s_and_b32 s3, s22, 7")
        e("    s_lshl_b32 s3, s3, 10")
        e("    s_and_b32 s13, s22, 0x18")
        e("    s_lshl_b32 s13, s13, 11")
        e("    s_or_b32 s3, s3, s13")
        e("    s_and_b32 s13, s22, 0x20")
        e("    s_lshl_b32 s13, s13, 18")
        e("    s_or_b32 s3, s3, s13")
        e("    s_or_b32 s3, s3, s20")
        e("    v_or_b32 v2, s3, v1")
        e("    s_waitcnt vmcnt(0)")
        e(f"    global_load_dwordx4 v[{X}:{X+3}], v2, s[4:5] {ldf}")
        e("    s_waitcnt vmcnt(0)")
        row_compute(e, X, T, A, G, EPS, 0, 1, 36)
        e(f"    global_store_dwordx4 v2, v[{X}:{X+3}], s[8:9] {stf}")
        e("    s_add_u32 s22, s22, 1")
        e("    s_cmp_lt_u32 s22, 64")
        e("    s_cbranch_scc1 L_slow")
    e("L_fin:")
    e("L_done:")
    e("    s_endpgm")
    vg = EPS + 1
    return (HDR.format(grid=grid, block=block, name=NAME, lds=64 if probe else 0) + "\n".join(o) + "\n"
            + FTR.format(name=NAME, vgpr=vg, sgpr=40, accum=(vg + 3) // 4 * 4))

if __name__ == "__main__":
    import ast
    fn, out = sys.argv[1], sys.argv[2]
    kw = {}
    for a in sys.argv[3:]:
        k, v = a.split("=", 1)
        try:
            v = ast.literal_eval(v)
        except Exception:
            pass
        kw[k] = v
    open(out, "w").write(globals()[fn](**kw))
```

```python
import sys
from gen import NAME, NROWS, ROWB, log2
from gen3 import HDR, FTR, row_compute

def gen_v4(D=3, k=4, ldf="nt", stf="sc1", force=None, diag=0, probe=1, K=2, WAITN=1, NPROBE=8,
           rd_after=0, block=512, npoll=4, warm=0, rd_early=0, res_after=1):
    R = 8; waves = block // 64; grid = NROWS // (R * waves)
    o = []
    e = o.append
    SENT = 0x7fc3a5a5
    P0 = 24
    e("    s_load_dwordx8 s[4:11], s[0:1], 0")
    e("    v_readfirstlane_b32 s12, v0                  ; wave*64")
    e("    s_lshr_b32 s13, s2, 3                        ; j")
    e("    s_and_b32 s14, s2, 3                         ; xl")
    e("    s_lshl2_add_u32 s14, s13, s14")
    e("    s_lshl_b32 s15, s14, 16")
    e("    s_lshl_b32 s16, s2, 11                       ; bit13 = (b>>2)&1")
    e("    v_and_b32 v1, 63, v0")
    e("    v_lshlrev_b32 v1, 4, v1                      ; lane*16")
    if block == 512:
        e("    s_and_b32 s18, s12, 0xc0                     ; (w&3)<<6")
        e("    s_mul_i32 s18, s18, 0x120                    ; (w&3)<<14 | (w&3)<<11")
        e("    s_lshr_b32 s19, s12, 8                       ; w>>2")
        e("    s_mul_i32 s19, s19, 0x800400                 ; <<23 | <<10")
    else:
        e("    s_mul_i32 s18, s12, 0x120                    ; w<<14 | w<<11")
        e("    s_lshr_b32 s19, s2, 8                        ; j>>5")
        e("    s_lshl_b32 s19, s19, 10")
    e("    s_or_b32 s18, s18, s19")
    e("    s_or_b32 s18, s18, s15")
    e("    s_lshl_b32 s19, s12, 7                       ; (w&1)<<13")
    e("    s_xor_b32 s19, s19, s16")
    e("    s_and_b32 s19, s19, 0x2000")
    e("    s_or_b32 s19, s19, s18")
    e("    v_or_b32 v2, s19, v1")
    AD = 16; X = 24; G = 8
    T = X + 4 * R; A = T + 8; EPS = A + 1
    for r in range(1, k):
        e(f"    v_xor_b32 v{AD+r}, {(r << 10) | ((r & 1) << 13):#x}, v2")
    addr = lambda r: "v2" if r == 0 else f"v{AD+r}"
    e(f"    s_cmpk_ge_u32 s2, {grid}")
    e("    s_cbranch_scc1 L_done")
    if probe:
        e(f"    s_mov_b32 s23, {SENT:#x}")
        for i in range(K):
            e(f"    s_mov_b32 s{P0+i}, s23")
        e("    s_or_b32 s20, s12, s2")
        e(f"    s_cmp_ge_u32 s20, {NPROBE}")
        e("    s_waitcnt lgkmcnt(0)")
        e("    s_cbranch_scc1 L_noprobe")
        e("    s_and_b32 s20, s16, 0x2000")
        e("    s_lshr_b32 s20, s20, 6")
        e("    s_or_b32 s20, s20, s15")
        def poff(i, side):
            m = i & 3; r = 7 - (i >> 2)
            return (m << 14) | (side << 13) | ((r ^ (2 * m)) << 10) | ((i & 1) << 8) | (side << 6) | (((i >> 1) & 1) << 9)
        for i in range(K):
            e(f"    s_load_dword s{P0+i}, s[4:5], s20 offset:{poff(i,0):#x}")
            e(f"    s_load_dword s{P0+K+i}, s[4:5], s20 offset:{poff(i,1):#x}")
        e("    s_cmp_lg_u32 0, 0                            ; scc=0")
        e("L_noprobe:")

    else:
        e("    s_waitcnt lgkmcnt(0)")
    ops = []
    def ld(r):
        b = X + 4 * r
        e(f"    global_load_dwordx4 v[{b}:{b+3}], {addr(r)}, s[4:5] {ldf}")
        ops.append(('l', r))
    def st(r):
        b = X + 4 * r
        e(f"    global_store_dwordx4 {addr(r)}, v[{b}:{b+3}], s[8:9] {stf}")
        ops.append(('s', r))
    def wait_for(op, tag=""):
        n = len(ops) - 1 - ops.index(op)
        e(f"    s_waitcnt vmcnt({min(n,63)})" + tag)
    ld(0)
    e("    global_load_dwordx4 v[4:7], v1, s[6:7]")
    ops.append(('g', 0))
    for r in range(1, D):
        ld(r)
    if probe and warm:
        e("    s_cbranch_scc0 L_nowarm")
        e("    s_load_dword s33, s[10:11], 128")
        if warm >= 2:
            e("    s_xor_b32 s20, s20, 64")
            e(f"    s_cmp_ge_u32 s20, {NPROBE}")
            e("    s_cbranch_scc1 L_nowarm")
            e("    s_mov_b32 s32, 0")
            e("    s_atomic_or s32, s[10:11], 0")
            e("    s_cmp_eq_u32 0, 0")
        e("L_nowarm:")
    e("    s_mov_b32 s0, 0xffff0000")
    e("    s_mov_b32 s1, 0x3b000000                     ; 1/512")
    e(f"    v_mov_b32 v{EPS}, 0x358637bd                 ; 1e-6")
    if diag:
        e("    s_mov_b32 s38, 0")
        e("    s_mov_b32 s39, 0")
    if probe:
        e("    s_cbranch_scc1 L_go")
        e(f"    s_waitcnt lgkmcnt({2*K - WAITN})")
        e("    s_mov_b32 s22, 0")
        for i in range(K):
            e(f"    s_cmp_lg_u32 s{P0+i}, s23")
            e("    s_addc_u32 s22, s22, 0")
        e(f"    s_cmp_gt_u32 s22, {WAITN // 2}")
        e("    s_cselect_b32 s20, 0, 0x2000")
        e("    s_xor_b32 s20, s20, s16")
        e("    s_and_b32 s20, s20, 0x2000")
        if diag: e("    s_or_b32 s38, s20, 0x10000")
        if force is not None:
            e(f"    s_mov_b32 s20, {force << 13}")
        e("    s_or_b32 s34, s20, 1")
        e("    s_mov_b32 s35, 0")
        e("    s_atomic_cmpswap s[34:35], s[10:11], 0")
        if diag: e("    s_nop 0 ;@T1")
        e("L_go:")
    e("    s_lshr_b32 s20, s15, 8")
    e("    s_xor_b32 s16, s16, s20")
    e("    s_and_b32 s16, s16, 0x2000")
    e("    s_or_b32 s18, s18, s16")
    wait_for(('g', 0))
    for i in range(4):
        e(f"    v_lshlrev_b32 v{G+2*i}, 16, v{4+i}")
        e(f"    v_and_b32 v{G+2*i+1}, s0, v{4+i}")
    known = False
    nextld = D
    def resolve():
        if probe:
            e("    s_waitcnt lgkmcnt(0)")
            e("    s_cmp_eq_u32 s3, 0")
            e("    s_cbranch_scc1 L_poll")
            e("L_have:")
            if diag: e("    s_nop 0 ;@T2")
            e("    s_and_b32 s3, s3, 0x2000")
            e("    s_xor_b32 s18, s18, s3")
        elif force:
            e("    s_xor_b32 s18, s18, 0x2000")
        e("    v_or_b32 v3, s18, v1")
        for r in range(k, R):
            e(f"    v_xor_b32 v{AD+r}, {(r << 10):#x}, v3")
    def rd():
        if probe: e("    s_load_dword s3, s[10:11], 0")
    for r in range(R):
        tag = (" ;@T1" if r == 0 and not diag else "") + (" ;@T2" if r == R - 1 and not diag else "")
        wait_for(('l', r), tag)
        if rd_early and r == rd_after and k < R:
            rd()
        while nextld < R and nextld <= r + D and (nextld < k or known):
            ld(nextld); nextld += 1
        row_compute(e, X + 4 * r, T, A, G, EPS, 0, 1, 36)
        st(r)
        if not rd_early and r == rd_after and k < R:
            rd()
        if r == res_after and k < R:
            resolve(); known = True
            while nextld < R and nextld <= r + D:
                ld(nextld); nextld += 1
    e("L_fin:")
    e("L_done:")
    e("    s_endpgm")
    if probe and k < R:
        e("L_poll:")
        e(f"    s_mov_b32 s22, {npoll}")
        e("L_poll1:")
        if diag: e("    s_add_u32 s39, s39, 1")
        e("    s_load_dword s3, s[10:11], 0 glc")
        e("    s_waitcnt lgkmcnt(0)")
        e("    s_cmp_lg_u32 s3, 0")
        e("    s_cbranch_scc1 L_have")
        e("    s_sub_u32 s22, s22, 1")
        e("    s_cmp_lg_u32 s22, 0")
        e("    s_cbranch_scc1 L_poll1")
        e("    s_mov_b32 s20, 1")
        e("    s_mov_b32 s21, 0")
        e("    s_atomic_cmpswap s[20:21], s[10:11], 0 glc")
        e("    s_waitcnt lgkmcnt(0)")
        e("    s_mov_b32 s3, s20")
        e("    s_branch L_have")
    vg = EPS + 1
    return (HDR.format(grid=grid, block=block, name=NAME, lds=0) + "\n".join(o) + "\n"
            + FTR.format(name=NAME, vgpr=vg, sgpr=40, accum=(vg + 3) // 4 * 4))

if __name__ == "__main__":
    import ast
    fn, out = sys.argv[1], sys.argv[2]
    kw = {}
    for a in sys.argv[3:]:
        k, v = a.split("=", 1)
        try:
            v = ast.literal_eval(v)
        except Exception:
            pass
        kw[k] = v
    open(out, "w").write(globals()[fn](**kw))
```

```python
import sys, re
src, out, kind = sys.argv[1], sys.argv[2], sys.argv[3]
s = open(src).read()
lab = "standalone__rmsnorm__sampling_kernel:\n"
s = s.replace(lab, lab + "    s_memrealtime s[40:41]\n")
def spin(name, reg):
    return f"""{name}:
    s_sleep 4
    s_memrealtime s[42:43]
    s_waitcnt lgkmcnt(0)
    s_sub_u32 s44, s42, {reg}
    s_cmp_lt_i32 s44, 0
    s_cbranch_scc1 {name}
"""
calc = {
 "total": "    s_add_u32 s50, s52, s53\n    s_add_u32 s50, s50, 1\n    s_lshl_b32 s50, s50, 4\n",
 "flips": "    s_mov_b32 s50, s54\n",
 "polls": "    s_mov_b32 s50, s55\n",
}
for k in range(8):
    calc[f"late{k}"] = f"    s_sub_u32 s50, s53, s{56+k}\n    s_lshl_b32 s50, s50, 6\n"
mn = "    s_mov_b32 s50, s56\n" + "".join(f"    s_min_u32 s50, s50, s{56+k}\n" for k in range(1, 8))
calc["skew"] = mn + "    s_sub_u32 s50, s53, s50\n    s_lshl_b32 s50, s50, 6\n"
calc["late01"] = "    s_max_u32 s50, s56, s57\n    s_sub_u32 s50, s53, s50\n    s_lshl_b32 s50, s50, 6\n"
calc["lastst"] = "    s_add_u32 s50, s64, s53\n    s_add_u32 s50, s50, 1\n    s_lshl_b32 s50, s50, 6\n"
body = """    s_waitcnt vmcnt(0)
    s_memrealtime s[46:47]
    s_waitcnt lgkmcnt(0)
    s_add_u32 s45, s40, 1200
""" + spin("L_sp0", "s45") + """    s_atomic_umax s46, s[10:11], 128
    s_not_b32 s48, s40
    s_getreg_b32 s49, hwreg(HW_REG_XCC_ID)
    s_and_b32 s49, s49, 7
    s_lshl_b32 s49, s49, 2
    s_add_u32 s49, s49, 144
    s_cmp_lg_u32 s12, 0
    s_cbranch_scc1 L_d1
    s_atomic_umax s48, s[10:11], 132
    s_atomic_umax s48, s[10:11], s49
L_d1:
    s_cmpk_lt_u32 s12, 0x3c0
    s_cbranch_scc1 L_d15
    s_atomic_umax s40, s[10:11], 176
L_d15:
    s_mov_b32 s51, 1
    s_bitcmp1_b32 s39, 8
    s_cbranch_scc0 L_d2
    s_atomic_add s51, s[10:11], 136
L_d2:
    s_and_b32 s44, s39, 0xff
    s_cbranch_scc0 L_d3
    s_atomic_add s51, s[10:11], 140
L_d3:
    s_waitcnt lgkmcnt(0)
    s_or_b32 s44, s12, s2
    s_cmp_lg_u32 s44, 0
    s_cbranch_scc1 L_done
    s_add_u32 s45, s40, 15000
""" + spin("L_sp1", "s45") + """    s_load_dwordx16 s[52:67], s[10:11], 128 glc
    s_waitcnt lgkmcnt(0)
""" + calc[kind] + """    s_min_u32 s50, s50, 20000
    s_add_u32 s45, s45, s50
    s_add_u32 s45, s45, 200
""" + spin("L_sp2", "s45")
s = s.replace("L_done:\n", body + "L_done:\n")
s = re.sub(r"next_free_sgpr \d+", "next_free_sgpr 72", s)
open(out, "w").write(s)
```

```python
import sys, re
src, out, kind = sys.argv[1], sys.argv[2], sys.argv[3]
s = open(src).read()
lab = "standalone__rmsnorm__sampling_kernel:\n"
s = s.replace(lab, lab + "    s_memrealtime s[40:41]\n")
def spin(name, reg):
    return f"""{name}:
    s_sleep 4
    s_memrealtime s[42:43]
    s_waitcnt lgkmcnt(0)
    s_sub_u32 s44, s42, {reg}
    s_cmp_lt_i32 s44, 0
    s_cbranch_scc1 {name}
"""
calc = {
 "total": "    s_add_u32 s50, s52, s53\n    s_add_u32 s50, s50, 1\n    s_lshl_b32 s50, s50, 4\n",
 "flips": "    s_mov_b32 s50, s54\n", "flips16": "    s_lshl_b32 s50, s54, 5\n", "polls16": "    s_lshl_b32 s50, s55, 5\n",
 "polls": "    s_mov_b32 s50, s55\n",
}
for k in range(8):
    calc[f"late{k}"] = f"    s_sub_u32 s50, s53, s{56+k}\n    s_lshl_b32 s50, s50, 6\n"
mn = "    s_mov_b32 s50, s56\n" + "".join(f"    s_min_u32 s50, s50, s{56+k}\n" for k in range(1, 8))
calc["skew"] = mn + "    s_sub_u32 s50, s53, s50\n    s_lshl_b32 s50, s50, 6\n"
calc["late01"] = "    s_max_u32 s50, s56, s57\n    s_sub_u32 s50, s53, s50\n    s_lshl_b32 s50, s50, 6\n"
calc["host"] = ""
calc["both"] = calc["total"] + "    s_cmpk_ge_u32 s54, 1000\n    s_cselect_b32 s44, 6000, 0\n    s_add_u32 s50, s50, s44\n"
calc["flips4"] = "    s_lshl_b32 s50, s54, 2\n"
calc["lastst"] = "    s_add_u32 s50, s64, s53\n    s_add_u32 s50, s50, 1\n    s_lshl_b32 s50, s50, 6\n"
body = """    s_waitcnt vmcnt(0)
    s_memrealtime s[46:47]
    s_waitcnt lgkmcnt(0)
    s_add_u32 s45, s40, 1200
""" + spin("L_sp0", "s45") + """    s_atomic_umax s46, s[10:11], 128
    s_not_b32 s48, s40
    s_getreg_b32 s49, hwreg(HW_REG_XCC_ID)
    s_and_b32 s49, s49, 7
    s_lshl_b32 s49, s49, 2
    s_add_u32 s49, s49, 144
    s_cmp_lg_u32 s12, 0
    s_cbranch_scc1 L_d1
    s_atomic_umax s48, s[10:11], 132
    s_atomic_umax s48, s[10:11], s49
L_d1:
    s_cmpk_lt_u32 s12, 0x3c0
    s_cbranch_scc1 L_d15
    s_atomic_umax s40, s[10:11], 176
L_d15:
    s_mov_b32 s51, 1
    s_bitcmp1_b32 s39, 8
    s_cbranch_scc0 L_d2
    s_atomic_add s51, s[10:11], 136
L_d2:
    s_and_b32 s44, s39, 0xff
    s_cbranch_scc0 L_d3
    s_atomic_add s51, s[10:11], 140
L_d3:
    s_waitcnt lgkmcnt(0)
    s_or_b32 s44, s12, s2
    s_cmp_lg_u32 s44, 0
    s_cbranch_scc1 L_done
    s_add_u32 s45, s40, 15000
""" + spin("L_sp1", "s45") + """    s_load_dwordx16 s[52:67], s[10:11], 128 glc
    s_waitcnt lgkmcnt(0)
""" + calc[kind] + """    s_min_u32 s50, s50, 20000
    s_add_u32 s45, s45, s50
    s_add_u32 s45, s45, 200
""" + spin("L_sp2", "s45")
if kind == "host":
    body = body[:body.index("    s_or_b32 s44, s12, s2")]
s = s.replace("L_done:\n", body + "L_done:\n")
s = re.sub(r"next_free_sgpr \d+", "next_free_sgpr 72", s)
open(out, "w").write(s)
```

```python
import sys, re
src, out, kind = sys.argv[1], sys.argv[2], sys.argv[3]
s = open(src).read()
lab = "standalone__rmsnorm__sampling_kernel:\n"
s = s.replace(lab, lab + "    s_memrealtime s[40:41]\n")
def spin(name, reg):
    return f"""{name}:
    s_sleep 4
    s_memrealtime s[42:43]
    s_waitcnt lgkmcnt(0)
    s_sub_u32 s44, s42, {reg}
    s_cmp_lt_i32 s44, 0
    s_cbranch_scc1 {name}
"""
calc = {
 "total": "    s_add_u32 s50, s52, s53\n    s_add_u32 s50, s50, 1\n    s_lshl_b32 s50, s50, 4\n",
 "flips": "    s_mov_b32 s50, s54\n", "flips16": "    s_lshl_b32 s50, s54, 5\n", "polls16": "    s_lshl_b32 s50, s55, 5\n",
 "polls": "    s_mov_b32 s50, s55\n",
}
for k in range(8):
    calc[f"late{k}"] = f"    s_sub_u32 s50, s53, s{56+k}\n    s_lshl_b32 s50, s50, 6\n"
mn = "    s_mov_b32 s50, s56\n" + "".join(f"    s_min_u32 s50, s50, s{56+k}\n" for k in range(1, 8))
calc["skew"] = mn + "    s_sub_u32 s50, s53, s50\n    s_lshl_b32 s50, s50, 6\n"
calc["late01"] = "    s_max_u32 s50, s56, s57\n    s_sub_u32 s50, s53, s50\n    s_lshl_b32 s50, s50, 6\n"
calc["host"] = ""
calc["warmtot"] = calc["total"] + "    s_add_u32 s50, s50, 5000\n    s_sub_u32 s44, s68, s40\n    s_cmpk_lt_u32 s44, 55\n    s_cselect_b32 s50, s50, 0\n"
calc["negl0"] = "    s_sub_u32 s44, s68, s40\n    s_min_u32 s44, s44, 150\n    s_sub_u32 s50, 150, s44\n    s_lshl_b32 s50, s50, 6\n"
calc["posl0"] = "    s_sub_u32 s44, s68, s40\n    s_min_u32 s50, s44, 150\n    s_lshl_b32 s50, s50, 6\n"
calc["negtot"] = "    s_add_u32 s50, s52, s53\n    s_add_u32 s50, s50, 1\n    s_min_u32 s50, s50, 1000\n    s_sub_u32 s50, 1000, s50\n    s_lshl_b32 s50, s50, 4\n"
s = s.replace(";@R\n", ";@R\n    s_memrealtime s[68:69]\n", 1)
calc["both"] = calc["total"] + "    s_cmpk_ge_u32 s54, 1000\n    s_cselect_b32 s44, 6000, 0\n    s_add_u32 s50, s50, s44\n"
calc["flips4"] = "    s_lshl_b32 s50, s54, 2\n"
calc["lastst"] = "    s_add_u32 s50, s64, s53\n    s_add_u32 s50, s50, 1\n    s_lshl_b32 s50, s50, 6\n"
if kind.startswith("c_"):
    calc[kind] = calc[kind[2:]] + "    s_sub_u32 s44, s68, s40\n    s_cmpk_ge_u32 s44, 58\n    s_cselect_b32 s50, s50, 0\n"
body = """    s_waitcnt vmcnt(0)
    s_memrealtime s[46:47]
    s_waitcnt lgkmcnt(0)
    s_add_u32 s45, s40, 1200
""" + spin("L_sp0", "s45") + """    s_atomic_umax s46, s[10:11], 128
    s_not_b32 s48, s40
    s_getreg_b32 s49, hwreg(HW_REG_XCC_ID)
    s_and_b32 s49, s49, 7
    s_lshl_b32 s49, s49, 2
    s_add_u32 s49, s49, 144
    s_cmp_lg_u32 s12, 0
    s_cbranch_scc1 L_d1
    s_atomic_umax s48, s[10:11], 132
    s_atomic_umax s48, s[10:11], s49
L_d1:
    s_cmpk_lt_u32 s12, 0x3c0
    s_cbranch_scc1 L_d15
    s_atomic_umax s40, s[10:11], 176
L_d15:
    s_mov_b32 s51, 1
    s_bitcmp1_b32 s39, 8
    s_cbranch_scc0 L_d2
    s_atomic_add s51, s[10:11], 136
L_d2:
    s_and_b32 s44, s39, 0xff
    s_cbranch_scc0 L_d3
    s_atomic_add s51, s[10:11], 140
L_d3:
    s_waitcnt lgkmcnt(0)
    s_or_b32 s44, s12, s2
    s_cmp_lg_u32 s44, 0
    s_cbranch_scc1 L_done
    s_add_u32 s45, s40, 15000
""" + spin("L_sp1", "s45") + """    s_load_dwordx16 s[52:67], s[10:11], 128 glc
    s_waitcnt lgkmcnt(0)
""" + calc[kind] + """    s_min_u32 s50, s50, 20000
    s_add_u32 s45, s45, s50
    s_add_u32 s45, s45, 200
""" + spin("L_sp2", "s45")
if kind == "host":
    body = body[:body.index("    s_or_b32 s44, s12, s2")]
s = s.replace("L_done:\n", body + "L_done:\n")
s = re.sub(r"next_free_sgpr \d+", "next_free_sgpr 72", s)
open(out, "w").write(s)
```
